```python
import torch

def _softmax(x, axis=-1):
    return torch.softmax(x, dim=axis)

def _gelu(x):
    return torch.nn.functional.gelu(x, approximate='tanh')

def _silu(x):
    return torch.nn.functional.silu(x)

def _sigmoid(x):
    return torch.sigmoid(x)

def _layernorm(x, axis=-1, eps=1e-05):
    m = x.mean(dim=axis, keepdim=True)
    v = x.var(dim=axis, keepdim=True, unbiased=False)
    return (x - m) / torch.sqrt(v + eps)

def _scatter_add(tgt, idx, src, axis=0):
    return tgt.clone().index_add_(axis, idx, src)

def _segment_sum(src, seg, n):
    out = torch.zeros((n,) + src.shape[1:], dtype=src.dtype)
    return out.index_add_(0, seg, src)

def _pad(x, pw):
    flat = tuple((v for pair in reversed(pw) for v in pair))
    return torch.nn.functional.pad(x, flat)
kernel_name = 'standalone__kv_cache_quant_pre_rope_vs_post_rope__prompt'

def setup_inputs():

    _w = lambda a: (lambda t: t.to(torch.bfloat16) if t.is_floating_point() else t)(torch.as_tensor(a))
    B, Sq, Skv = (1, 2048, 2048)
    H, Dh0 = (16, 128)
    G = -1 if -1 > 0 else Dh0
    G = max(2, G // 2 * 2)
    Dh = max(G, Dh0 // G * G)
    Skv = max(Skv, Sq)
    ng = Dh // G
    bits = 3 if 3 > 1 else 4
    bits = max(2, min(8, bits))
    qmax = (1 << bits) - 1
    half = Dh // 2
    inv = 1.0 / 10000.0 ** (torch.arange(half) / max(1, half))
    ang_k = torch.arange(Skv)[:, None] * inv[None, :]
    ang_q = torch.arange(Skv - Sq, Skv)[:, None] * inv[None, :]
    kc = torch.cat([torch.cos(ang_k), torch.cos(ang_k)], dim=-1)
    ks = torch.cat([torch.sin(ang_k), torch.sin(ang_k)], dim=-1)
    qc = torch.cat([torch.cos(ang_q), torch.cos(ang_q)], dim=-1)
    qs = torch.cat([torch.sin(ang_q), torch.sin(ang_q)], dim=-1)
    qk_i = torch.randint(0, qmax + 1, (B, H, Skv, Dh)).to(torch.int32)
    qv_i = torch.randint(0, qmax + 1, (B, H, Skv, Dh)).to(torch.int32)
    ksc = torch.abs((lambda *s: torch.randn(*s, dtype=torch.bfloat16) * 0.4)(B, H, Skv, ng)) * 0.1 + 0.01
    kzp = torch.full((B, H, Skv, ng), qmax / 2.0)
    vsc = torch.abs((lambda *s: torch.randn(*s, dtype=torch.bfloat16) * 0.4)(B, H, Skv, ng)) * 0.1 + 0.01
    vzp = torch.full((B, H, Skv, ng), qmax / 2.0)
    return {'q': _w((lambda *s: torch.randn(*s, dtype=torch.bfloat16) * 6.4)(B, H, Sq, Dh) * 0.5), 'qk': _w(qk_i), 'k_scales': _w(ksc), 'k_zeros': _w(kzp), 'qv': _w(qv_i), 'v_scales': _w(vsc), 'v_zeros': _w(vzp), 'q_cos': _w(qc), 'q_sin': _w(qs), 'k_cos': _w(kc), 'k_sin': _w(ks)}

def reference(q, qk, k_scales, k_zeros, qv, v_scales, v_zeros, q_cos, q_sin, k_cos, k_sin):
    B, H, Sq, Dh = q.shape
    ng = k_scales.shape[-1]
    G = Dh // ng
    half = Dh // 2
    ks = (lambda x, n, axis: torch.repeat_interleave(x, n, dim=axis))(k_scales, G, axis=-1)
    kz = (lambda x, n, axis: torch.repeat_interleave(x, n, dim=axis))(k_zeros, G, axis=-1)
    k = ((lambda x, dt: x.to(dt))(qk, q.dtype) - kz) * ks
    vs = (lambda x, n, axis: torch.repeat_interleave(x, n, dim=axis))(v_scales, G, axis=-1)
    vz = (lambda x, n, axis: torch.repeat_interleave(x, n, dim=axis))(v_zeros, G, axis=-1)
    v = ((lambda x, dt: x.to(dt))(qv, q.dtype) - vz) * vs
    k1 = k[..., :half].clone()
    k2 = k[..., half:].clone()
    krh = torch.concatenate([-k2, k1], axis=-1)
    kr = k * k_cos[None, None, :, :] + krh * k_sin[None, None, :, :]
    q1 = q[..., :half].clone()
    q2 = q[..., half:].clone()
    qrh = torch.concatenate([-q2, q1], axis=-1)
    qr = q * q_cos[None, None, :, :] + qrh * q_sin[None, None, :, :]
    logits = torch.einsum('bhqd,bhkd->bhqk', qr, kr) * float(Dh) ** (-0.5)
    attn = _softmax(logits, axis=-1)
    out = torch.einsum('bhqk,bhkd->bhqd', attn, v)
    return out
```

```python
from common import *
O, Q, S, P, F, NEGM, L = 0, 64, 96, 128, 144, 176, 192
VA0, VA1, VT = 194, 195, 196
PD, R, D = 6, 8, 4
FLAG_LDS = 131072
def mfma(d, a_, b_, c): return f"v_mfma_f32_32x32x16_bf16 {v(d,16)}, {v(a_,4)}, {v(b_,4)}, {c}"
def emit_stage(a, X, i0=0, i1=32, generic=False, barrier=True, last_reads=True, extra=None):
    va_cur = VA0 if X & 1 else VA1
    va_nxt = VA1 if X & 1 else VA0
    for i in range(i0, i1):
        b, g = i >> 4, i & 15
        n = 2 * X + b
        ok = lambda m: generic or (0 <= m <= 63)
        fr = F + 4 * (i % R)
        if i % 2 == 0: a(f"s_waitcnt lgkmcnt({PD-2})")
        if g < 8:
            if ok(n + 1):
                Sd = S + 16 * ((n + 1) & 1)
                a(mfma(Sd, fr, Q + 4 * g, v(NEGM, 16) if g == 0 else v(Sd, 16)))
        else:
            if ok(n - 1):
                c = g - 8; db, tt = c & 3, c >> 2
                a(mfma(O + 16 * db, fr, P + 8 * ((n - 1) & 1) + 4 * tt, v(O + 16 * db, 16)))
            elif g == 8: a("s_nop 15")
        j = i + PD
        if j == 32 and barrier: a("s_barrier")
        if j < 32: a(f"ds_read_b128 {v(F+4*(j%R),4)}, {v(va_cur)} offset:{j*1024}")
        elif last_reads: a(f"ds_read_b128 {v(F+4*(j%R),4)}, {v(va_nxt)} offset:{(j-32)*1024}")
        if i == 27: a(f"v_xor_b32 {v(va_cur)}, 0x10000, {v(va_cur)}")
        G = 16 * n + g
        m, e = divmod(G + D, 16)
        if ok(m): a(f"v_exp_f32 {v(S+16*(m&1)+e)}, {v(S+16*(m&1)+e)}")
        m, e = divmod(G + D - 1, 16)
        if ok(m): a(f"v_add_f32 {v(L+(e&1))}, {v(L+(e&1))}, {v(S+16*(m&1)+e)}")
        m, e = divmod(G + D - 2, 16)
        if e % 2 == 0 and ok(m):
            kx = e // 2
            a(f"v_cvt_pk_bf16_f32 {v(P+8*(m&1)+kx)}, {v(S+16*(m&1)+e)}, {v(S+16*(m&1)+e+1)}")
        if extra: extra(a, i)
def gen_attn(name, DBG=False, PRIO=1):
    a = Asm()
    a("s_cmp_ge_u32 s2, 256"); a(f"s_cbranch_scc1 {name}_end")
    a("s_load_dwordx2 s[4:5], s[0:1], 0")
    a("s_load_dwordx4 s[8:11], s[0:1], 56")
    a("s_load_dwordx2 s[12:13], s[0:1], 88")
    a("s_load_dwordx2 s[14:15], s[0:1], 104")
    a("v_lshrrev_b32 v1, 6, v0"); a("v_and_b32 v2, 63, v0"); a("s_nop 0"); a("v_readfirstlane_b32 s20, v1")
    a("s_and_b32 s21, s2, 7"); a("s_lshr_b32 s22, s2, 7"); a("s_lshl_b32 s22, s22, 3"); a("s_add_u32 s21, s21, s22")
    a("s_lshr_b32 s22, s2, 3"); a("s_and_b32 s22, s22, 15")
    a("s_lshl_b32 s23, s21, 20")
    a("s_waitcnt lgkmcnt(0)")
    srd(a, 24, 14, 23, 0x100000)
    stamp(a, 0, DBG, 14)
    a("s_mov_b32 s19, 0")
    a("s_cmp_ge_u32 s20, 4"); a(f"s_cbranch_scc1 {name}_loader")
    if PRIO: a(f"s_setprio {PRIO}")
    a("s_lshl_b32 s28, s22, 15"); a("s_lshl_b32 s29, s20, 13"); a("s_add_u32 s28, s28, s29")
    a("s_lshl_b32 s29, s21, 19"); a("s_add_u32 s29, s29, s28")
    srd(a, 32, 4, 29, 8192); srd(a, 36, 8, 28, 8192); srd(a, 40, 10, 28, 8192); srd(a, 44, 12, 29, 8192)
    a("v_and_b32 v3, 31, v2"); a("v_lshrrev_b32 v4, 5, v2")
    a(f"v_lshlrev_b32 {v(VT)}, 8, v3"); a(f"v_lshl_add_u32 {v(VT)}, v4, 4, {v(VT)}")
    a(f"v_lshlrev_b32 {v(VT+1)}, 4, v2")
    RQ, RC, RS = 0, 32, 96
    for j in range(4):
        for hi in range(2):
            a(f"buffer_load_dwordx4 {v(RQ+8*j+4*hi,4)}, {v(VT)}, s[32:35], 0 offen offset:{32*j+128*hi}")
        for hi in range(2):
            a(f"buffer_load_dwordx4 {v(RC+8*j+4*hi,4)}, {v(VT)}, s[36:39], 0 offen offset:{32*j+128*hi}")
        for hi in range(2):
            a(f"buffer_load_dwordx4 {v(RS+8*j+4*hi,4)}, {v(VT)}, s[40:43], 0 offen offset:{32*j+128*hi}")
    a(f"v_mov_b32 {v(VT+2)}, 0"); a(f"v_mov_b32 {v(VT+3)}, {FLAG_LDS}")
    a(f"ds_write_b32 {v(VT+3)}, {v(VT+2)}")
    T = 128
    for j in range(4):
        a(f"s_waitcnt vmcnt({18 - 6*j})")
        x1, x2, c1, c2, s1, s2, r = T, T + 1, T + 2, T + 3, T + 4, T + 5, T + 6
        for e in range(8):
            un = unpack_hi if e & 1 else unpack_lo
            un(a, x1, RQ + 8*j + (e >> 1)); un(a, x2, RQ + 8*j + 4 + (e >> 1))
            un(a, c1, RC + 8*j + (e >> 1)); un(a, c2, RC + 8*j + 4 + (e >> 1))
            un(a, s1, RS + 8*j + (e >> 1)); un(a, s2, RS + 8*j + 4 + (e >> 1))
            r1, r2 = r + (e & 1), r + 2 + (e & 1)
            a(f"v_mul_f32 {v(s1)}, {v(x2)}, {v(s1)}")
            a(f"v_mul_f32 {v(s2)}, {v(x1)}, {v(s2)}")
            a(f"v_fma_f32 {v(r1)}, {v(x1)}, {v(c1)}, -{v(s1)}")
            a(f"v_fma_f32 {v(r2)}, {v(x2)}, {v(c2)}, {v(s2)}")
            if e & 1:
                u = e >> 2; p = (e >> 1) & 1
                qd = Q + 4 * (2 * j + u)
                a(f"v_cvt_pk_bf16_f32 {v(qd+p)}, {v(r)}, {v(r+1)}")
                a(f"v_cvt_pk_bf16_f32 {v(qd+2+p)}, {v(r+2)}, {v(r+3)}")
    for i in range(16): a(f"v_mov_b32 {v(NEGM+i)}, 0")
    a.label(f"{name}_main")
    for i in range(64): a(f"v_mov_b32 {v(O+i)}, 0")
    a(f"v_mov_b32 {v(L)}, 0"); a(f"v_mov_b32 {v(L+1)}, 0")
    a(f"v_mov_b32 {v(VA0)}, {v(VT+1)}")
    a(f"v_add_u32 {v(VA1)}, 0x8000, {v(VT+1)}")
    a("s_waitcnt lgkmcnt(0)")
    a("s_barrier")
    stamp(a, 1, DBG, 14)
    for i in range(16, 16 + PD): a(f"ds_read_b128 {v(F+4*(i%R),4)}, {v(VA0)} offset:{i*1024}")
    emit_stage(a, -1, 16, 32)
    emit_stage(a, 0)
    a("s_mov_b32 s18, 0")
    a.label(f"{name}_loop")
    emit_stage(a, 1, generic=True)
    emit_stage(a, 2, generic=True)
    a("s_add_u32 s18, s18, 1"); a("s_cmp_lt_u32 s18, 15"); a(f"s_cbranch_scc1 {name}_loop")
    emit_stage(a, 31)
    emit_stage(a, 32, 0, 16, barrier=False)
    stamp(a, 2, DBG, 14)
    a("s_waitcnt lgkmcnt(0)")
    lt, lu = VT + 4, VT + 5
    a(f"v_add_f32 {v(lt)}, {v(L)}, {v(L+1)}")
    a(f"v_mov_b32 {v(lu)}, {v(lt)}")
    a("s_nop 1")
    a(f"v_permlane32_swap_b32 {v(lt)}, {v(lu)}")
    a("s_nop 1")
    a(f"v_add_f32 {v(lt)}, {v(lt)}, {v(lu)}")
    a(f"v_rcp_f32 {v(lu)}, {v(lt)}")
    a(f"v_cmp_le_f32 vcc, {f2u(2.0**-40):#x}, {v(lt)}")
    a("s_nop 3")
    a("s_mov_b64 s[30:31], vcc")
    a(f"v_cmp_ge_f32 vcc, {f2u(2.0**40):#x}, {v(lt)}")
    a("s_nop 3")
    a("s_and_b64 s[30:31], s[30:31], vcc")
    for db in range(4):
        for G in range(2):
            base = O + 16 * db + 8 * G
            for k in range(8): a(f"v_mul_f32 {v(base+k)}, {v(base+k)}, {v(lu)}")
            t = S + 4 * (2 * db + G)
            a(f"v_cvt_pk_bf16_f32 {v(t)}, {v(base)}, {v(base+1)}")
            a(f"v_cvt_pk_bf16_f32 {v(t+1)}, {v(base+2)}, {v(base+3)}")
            a(f"v_cvt_pk_bf16_f32 {v(t+2)}, {v(base+4)}, {v(base+5)}")
            a(f"v_cvt_pk_bf16_f32 {v(t+3)}, {v(base+6)}, {v(base+7)}")
            a("s_nop 1")
            a(f"v_permlane32_swap_b32 {v(t)}, {v(t+2)}")
            a(f"v_permlane32_swap_b32 {v(t+1)}, {v(t+3)}")
            a("s_nop 1")
            a(f"buffer_store_dwordx4 {v(t,4)}, {v(VT)}, s[44:47], 0 offen offset:{64*db+32*G}")
    a("s_cmp_eq_u64 s[30:31], -1"); a(f"s_cbranch_scc1 {name}_safe")
    a(f"v_mov_b32 {v(VT+2)}, 1"); a(f"v_mov_b32 {v(VT+3)}, {FLAG_LDS}")
    a(f"ds_write_b32 {v(VT+3)}, {v(VT+2)}")
    a.label(f"{name}_safe")
    a("s_waitcnt lgkmcnt(0)")
    a("s_barrier")
    a("s_cmp_lg_u32 s19, 0"); a(f"s_cbranch_scc1 {name}_done")
    a(f"v_mov_b32 {v(VT+3)}, {FLAG_LDS}")
    a(f"ds_read_b32 {v(VT+2)}, {v(VT+3)}")
    a("s_waitcnt lgkmcnt(0)")
    a(f"v_readfirstlane_b32 s18, {v(VT+2)}")
    a("s_cmp_eq_u32 s18, 0"); a(f"s_cbranch_scc1 {name}_done")
    a("s_mov_b32 s19, 1")
    M = VT + 6
    a(f"v_mov_b32 {v(M)}, 0xff800000")
    a("s_mov_b32 s18, 0")
    a.label(f"{name}_maxloop")
    a("s_lshr_b32 s16, s18, 1"); a("s_lshl_b32 s16, s16, 15"); a("s_and_b32 s17, s18, 1"); a("s_lshl_b32 s17, s17, 13"); a("s_add_u32 s16, s16, s17")
    a("s_add_u32 s17, s16, 4096")
    for c in range(8):
        a(f"buffer_load_dwordx4 {v(F+4*c,4)}, {v(VT+1)}, s[24:27], {'s16' if c < 4 else 's17'} offen offset:{(c&3)*1024}")
    a("s_waitcnt vmcnt(0)")
    for c in range(8): a(mfma(S, F + 4*c, Q + 4*c, "0" if c == 0 else v(S, 16)))
    a("s_nop 15"); a("s_nop 7")
    for i in range(16): a(f"v_max_f32 {v(M)}, {v(M)}, {v(S+i)}")
    a("s_add_u32 s18, s18, 1"); a("s_cmp_lt_u32 s18, 64"); a(f"s_cbranch_scc1 {name}_maxloop")
    a(f"v_mov_b32 {v(M+1)}, {v(M)}")
    a("s_nop 1")
    a(f"v_permlane32_swap_b32 {v(M)}, {v(M+1)}")
    a("s_nop 1")
    a(f"v_max_f32 {v(M)}, {v(M)}, {v(M+1)}")
    for i in range(16): a(f"v_sub_f32 {v(NEGM+i)}, 0, {v(M)}")
    a(f"s_branch {name}_main")
    a.label(f"{name}_done")
    if DBG:
        a("s_waitcnt vmcnt(0)")
        stamp(a, 3, DBG, 14)
    a("s_endpgm")
    a.label(f"{name}_loader")
    a("s_sub_u32 s21, s20, 4")
    a(f"v_lshlrev_b32 {v(VT+1)}, 4, v2")
    a("s_mov_b32 s28, 0"); a("s_mov_b32 s29, 8192")
    a("s_cmp_eq_u32 s21, 1"); a("s_cselect_b32 s28, -1, s28"); a("s_cselect_b32 s29, 24576, s29")
    a("s_cmp_eq_u32 s21, 2"); a("s_cselect_b32 s28, 1, s28"); a("s_cselect_b32 s29, 0, s29")
    a("s_cmp_eq_u32 s21, 3"); a("s_cselect_b32 s29, 16384, s29")
    a("s_lshl_b32 s30, s21, 13")
    def issue():
        a("s_add_i32 s16, s31, s28"); a("s_max_i32 s16, s16, 0"); a("s_min_i32 s16, s16, 31")
        a("s_lshl_b32 s16, s16, 15"); a("s_add_u32 s16, s16, s29"); a("s_add_u32 s17, s16, 4096")
        a("s_add_u32 m0, s33, s30")
        a("s_add_u32 s33, s33, 0x8000")
        for j in range(4): a(f"buffer_load_dwordx4 {v(VT+1)}, s[24:27], s16 offen offset:{j*1024} lds")
        a("s_add_u32 m0, m0, 4096")
        a("s_and_b32 s33, s33, 0x1ffff")
        for j in range(4): a(f"buffer_load_dwordx4 {v(VT+1)}, s[24:27], s17 offen offset:{j*1024} lds")
        a("s_add_i32 s31, s31, 1")
    a.label(f"{name}_lmain")
    a("s_mov_b32 s31, -1"); a("s_mov_b32 s33, 0")
    for t in range(3): issue()
    a("s_waitcnt vmcnt(16)")
    a("s_barrier")
    a.label(f"{name}_lloop")
    a("s_waitcnt vmcnt(8)")
    a("s_barrier")
    issue()
    a("s_cmp_le_i32 s31, 32"); a(f"s_cbranch_scc1 {name}_lloop")
    a("s_waitcnt vmcnt(8)"); a("s_barrier")
    a("s_waitcnt vmcnt(0)"); a("s_barrier")
    a("s_barrier")
    a("s_cmp_lg_u32 s19, 0"); a(f"s_cbranch_scc1 {name}_end")
    a(f"v_mov_b32 {v(VT+3)}, {FLAG_LDS}")
    a(f"ds_read_b32 {v(VT+2)}, {v(VT+3)}")
    a("s_waitcnt lgkmcnt(0)")
    a(f"v_readfirstlane_b32 s18, {v(VT+2)}")
    a("s_mov_b32 s19, 1")
    a("s_cmp_lg_u32 s18, 0"); a(f"s_cbranch_scc1 {name}_lmain")
    a.label(f"{name}_end")
    a("s_endpgm")
    return a
```

```python
import sys
sys.path.insert(0, "tools")
from asmlib import *
LOG2E_SCALE = 1.4426950408889634 / (128 ** 0.5)
import struct
def f2u(x): return struct.unpack("<I", struct.pack("<f", x))[0]
def srd(a, sreg, ptr_s, off_s, nrec):
    if off_s is None:
        a(f"s_mov_b32 {s(sreg)}, {s(ptr_s)}"); a(f"s_mov_b32 {s(sreg+1)}, {s(ptr_s+1)}")
    else:
        a(f"s_add_u32 {s(sreg)}, {s(ptr_s)}, {s(off_s)}"); a(f"s_addc_u32 {s(sreg+1)}, {s(ptr_s+1)}, 0")
    a(f"s_mov_b32 {s(sreg+2)}, {nrec:#x}"); a(f"s_mov_b32 {s(sreg+3)}, 0x20000")
def unpack_lo(a, d, src): a(f"v_lshlrev_b32 {v(d)}, 16, {v(src)}")
def unpack_hi(a, d, src): a(f"v_and_b32 {v(d)}, 0xffff0000, {v(src)}")
def stamp(a, idx, on, sptr=None, tmp_s=96, tmpv=(250, 251)):
    if not on: return
    a(f"s_memrealtime s[{tmp_s}:{tmp_s+1}]")
    a("s_waitcnt lgkmcnt(0)")
    a(f"v_mov_b32 {v(tmpv[0])}, {s(tmp_s)}")
    a(f"s_lshl_b32 {s(tmp_s)}, s2, 6")
    a(f"s_add_u32 {s(tmp_s)}, {s(tmp_s)}, {0xffe0000 + idx*4:#x}")
    a(f"v_mov_b32 {v(tmpv[1])}, {s(tmp_s)}")
    a(f"global_store_dword {v(tmpv[1])}, {v(tmpv[0])}, {s(sptr,2)}")
```

```python
from common import *
def k_item_math(a, X, CS, SC, ZR, T, OUT):
    sc, nz = T, T + 1
    a(f"v_lshlrev_b32 {v(sc)}, 16, {v(SC)}")
    a(f"v_lshlrev_b32 {v(nz)}, 16, {v(ZR)}")
    a(f"v_mul_f32 {v(sc)}, {f2u(LOG2E_SCALE):#x}, {v(sc)}")
    for i in range(16): a(f"v_cvt_f32_i32 {v(X+i)}, {v(X+i)}")
    a(f"v_mul_f32 {v(nz)}, {v(nz)}, {v(sc)}")
    for i in range(16): a(f"v_fma_f32 {v(X+i)}, {v(X+i)}, {v(sc)}, -{v(nz)}")
    c1, c2, s1, s2, r = T + 2, T + 3, T + 4, T + 5, T + 6
    for e in range(8):
        un = unpack_hi if e & 1 else unpack_lo
        un(a, c1, CS + (e >> 1)); un(a, c2, CS + 4 + (e >> 1)); un(a, s1, CS + 8 + (e >> 1)); un(a, s2, CS + 12 + (e >> 1))
        x1, x2 = X + e, X + 8 + e
        r1, r2 = r + (e & 1), r + 2 + (e & 1)
        a(f"v_mul_f32 {v(s1)}, {v(x2)}, {v(s1)}")
        a(f"v_mul_f32 {v(s2)}, {v(x1)}, {v(s2)}")
        a(f"v_fma_f32 {v(r1)}, {v(x1)}, {v(c1)}, -{v(s1)}")
        a(f"v_fma_f32 {v(r2)}, {v(x2)}, {v(c2)}, {v(s2)}")
        if e & 1:
            u = e >> 2; p = (e >> 1) & 1
            a(f"v_cvt_pk_bf16_f32 {v(OUT+4*u+p)}, {v(r)}, {v(r+1)}")
            a(f"v_cvt_pk_bf16_f32 {v(OUT+4*u+2+p)}, {v(r+2)}, {v(r+3)}")
def gen_prep(name, STORE="", DBG=False):
    a = Asm()
    a("s_cmp_ge_u32 s2, 512"); a(f"s_cbranch_scc1 {name}_end")
    a("s_load_dwordx4 s[4:7], s[0:1], 8")
    a("s_load_dwordx4 s[8:11], s[0:1], 24")
    a("s_load_dwordx4 s[12:15], s[0:1], 40")
    a("s_load_dwordx4 s[16:19], s[0:1], 72")
    a("s_load_dwordx2 s[20:21], s[0:1], 104")
    a("s_and_b32 s22, s2, 7"); a("s_lshr_b32 s23, s2, 8"); a("s_lshl_b32 s23, s23, 3"); a("s_add_u32 s22, s22, s23")
    a("s_lshr_b32 s23, s2, 3"); a("s_and_b32 s23, s23, 31")
    a("s_lshl_b32 s24, s22, 20"); a("s_lshl_b32 s25, s23, 15"); a("s_add_u32 s24, s24, s25")
    a("s_lshl_b32 s25, s23, 14")
    a("s_lshl_b32 s26, s22, 12"); a("s_lshl_b32 s27, s23, 7"); a("s_add_u32 s26, s26, s27")
    a("v_lshrrev_b32 v1, 6, v0"); a("v_and_b32 v2, 63, v0")
    a("v_and_b32 v3, 7, v2"); a("v_lshrrev_b32 v4, 3, v2")
    a("v_lshl_add_u32 v5, v1, 4, v3")
    a("v_lshlrev_b32 v6, 9, v5"); a("v_lshl_add_u32 v6, v4, 5, v6")
    a("v_lshlrev_b32 v7, 8, v5"); a("v_lshl_add_u32 v7, v4, 4, v7")
    a("v_lshlrev_b32 v8, 1, v5")
    a("v_lshrrev_b32 v9, 1, v1"); a("v_lshlrev_b32 v9, 13, v9")
    a("v_lshrrev_b32 v10, 1, v4"); a("v_lshl_add_u32 v9, v10, 11, v9")
    a("v_and_b32 v10, 1, v4"); a("v_lshl_add_u32 v9, v10, 9, v9")
    a("v_and_b32 v10, 31, v5"); a("v_lshl_add_u32 v9, v10, 4, v9")
    a("v_and_b32 v10, 31, v2"); a("v_lshrrev_b32 v11, 5, v2")
    a("v_lshlrev_b32 v12, 4, v1"); a("v_lshl_add_u32 v12, v11, 2, v12")
    a("v_lshlrev_b32 v13, 9, v12"); a("v_lshl_add_u32 v13, v10, 2, v13")
    a("v_lshlrev_b32 v12, 1, v12")
    a("v_lshlrev_b32 v14, 12, v1"); a("v_lshl_add_u32 v14, v2, 4, v14")
    a("v_add_u32 v14, 0x4000, v14")
    a("s_waitcnt lgkmcnt(0)")
    srd(a, 28, 4, 24, 32768)
    srd(a, 32, 10, 24, 32768)
    srd(a, 36, 20, 24, 32768)
    srd(a, 40, 16, 25, 16384)
    srd(a, 44, 18, 25, 16384)
    srd(a, 48, 6, 26, 128)
    srd(a, 52, 8, 26, 128)
    srd(a, 56, 12, 26, 128)
    srd(a, 60, 14, 26, 128)
    a("s_movk_i32 s64, 0x1000")
    stamp(a, 0, DBG, 20)
    KX, KCS, KSC = 16, 48, 80
    VX, VSC = 84, 116
    n = 0
    for it in range(2):
        so = "s64" if it else "0"
        X = KX + 16 * it; CS = KCS + 16 * it
        a(f"buffer_load_ushort {v(KSC+2*it)}, v8, s[48:51], 0 offen offset:{16*it}")
        a(f"buffer_load_ushort {v(KSC+2*it+1)}, v8, s[52:55], 0 offen offset:{16*it}")
        for hi in range(2):
            for u in range(2):
                a(f"buffer_load_dwordx4 {v(X+8*hi+4*u,4)}, v6, s[28:31], {so} offen offset:{256*hi+16*u}")
        for k, sr in ((0, 40), (1, 44)):
            for hi in range(2):
                a(f"buffer_load_dwordx4 {v(CS+8*k+4*hi,4)}, v7, s[{sr}:{sr+3}], 0 offen offset:{2048*it+128*hi}")
    for jj in range(2):
        a(f"buffer_load_dwordx2 {v(VSC+2*jj,2)}, v12, s[56:59], 0 offen offset:{16*jj}")
        a(f"buffer_load_dwordx2 {v(VSC+4+2*jj,2)}, v12, s[60:63], 0 offen offset:{16*jj}")
    for db in range(4):
        for jj in range(2):
            so = "s64" if jj else "0"
            for i in range(4):
                a(f"buffer_load_dword {v(VX+8*db+4*jj+i)}, v13, s[32:35], {so} offen offset:{512*i+128*db}")
    T = 128; OUT = 144
    a("s_waitcnt vmcnt(46)")
    k_item_math(a, KX, KCS, KSC, KSC + 1, T, OUT)
    for u in range(2): a(f"buffer_store_dwordx4 {v(OUT+4*u,4)}, v9, s[36:39], 0 offen offset:{1024*u} {STORE}")
    a("s_waitcnt vmcnt(38)")
    k_item_math(a, KX + 16, KCS + 16, KSC + 2, KSC + 3, T, OUT + 8)
    for u in range(2): a(f"buffer_store_dwordx4 {v(OUT+8+4*u,4)}, v9, s[36:39], 0 offen offset:{1024*u+128} {STORE}")
    a("s_waitcnt vmcnt(36)")
    for jj in range(2):
        for i in range(4):
            un = unpack_hi if i & 1 else unpack_lo
            un(a, T + 4*jj + i, VSC + 2*jj + (i >> 1)); un(a, T + 8 + 4*jj + i, VSC + 4 + 2*jj + (i >> 1))
    for e in range(8): a(f"v_mul_f32 {v(T+8+e)}, {v(T+8+e)}, {v(T+e)}")
    for db in range(4):
        a(f"s_waitcnt vmcnt({28 - 7*db})")
        X = VX + 8 * db
        for e in range(8): a(f"v_cvt_f32_i32 {v(X+e)}, {v(X+e)}")
        for e in range(8): a(f"v_fma_f32 {v(X+e)}, {v(X+e)}, {v(T+e)}, -{v(T+8+e)}")
        O4 = 16 + 4 * db
        for p in range(4): a(f"v_cvt_pk_bf16_f32 {v(O4+p)}, {v(X+2*p)}, {v(X+2*p+1)}")
        a(f"buffer_store_dwordx4 {v(O4,4)}, v14, s[36:39], 0 offen offset:{1024*db} {STORE}")
    if DBG:
        a("s_waitcnt vmcnt(0)")
        stamp(a, 1, DBG, 20)
    a.label(f"{name}_end")
    a("s_endpgm")
    return a
```

```python
class Asm:
    def __init__(self):
        self.lines = []
    def __call__(self, s):
        self.lines.append("    " + s)
    def label(self, s):
        self.lines.append(s + ":")
    def raw(self, s):
        self.lines.append(s)
    def comment(self, s):
        self.lines.append("    ; " + s)
    def text(self):
        return "\n".join(self.lines) + "\n"
def v(a, n=1):
    return f"v{a}" if n == 1 else f"v[{a}:{a+n-1}]"
def s(a, n=1):
    return f"s{a}" if n == 1 else f"s[{a}:{a+n-1}]"
def acc(a, n=1):
    return f"a{a}" if n == 1 else f"a[{a}:{a+n-1}]"
HEADER = open("standalone__kv_cache_quant_pre_rope_vs_post_rope__prompt.s.ref").read().split("; Override")[0]
def kd(name, vgpr, sgpr=100, accum=None):
    if accum is None: accum = (vgpr + 3) // 4 * 4
    return f""".amdhsa_kernel {name}
  .amdhsa_next_free_vgpr {vgpr}
  .amdhsa_next_free_sgpr {sgpr}
  .amdhsa_accum_offset {accum}
  .amdhsa_group_segment_fixed_size 0
  .amdhsa_kernarg_size 112
  .amdhsa_user_sgpr_count 2
  .amdhsa_user_sgpr_kernarg_segment_ptr 1
  .amdhsa_system_sgpr_workgroup_id_x 1
.end_amdhsa_kernel
"""
def kernel_head(name):
    return f""".globl {name}
.p2align 8
.type {name},@function
{name}:
"""
```

```python
from common import *
from prep import gen_prep
from attn import gen_attn
def build(fname, STORE="", DBG=False, PRIO=1):
    p = gen_prep("prep_kernel", STORE, DBG); t = gen_attn("attn_kernel", DBG, PRIO)
    txt = HEADER + "; @launch kernel=prep_kernel grid=(512,1,1) block=(256,1,1) lds=0\n"
    txt += "; @launch kernel=attn_kernel grid=(256,1,1) block=(512,1,1) lds=131136\n"
    txt += '.amdgcn_target "amdgcn-amd-amdhsa--gfx950"\n.text\n'
    txt += kernel_head("prep_kernel") + p.text() + kernel_head("attn_kernel") + t.text()
    txt += '.section .rodata,"a"\n.p2align 6\n' + kd("prep_kernel", 256 if DBG else 160) + ".p2align 6\n" + kd("attn_kernel", 256 if DBG else 208)
    open(fname, "w").write(txt)
if __name__ == "__main__":
    build("two.s"); build("two_dbg.s", DBG=True)
    build("two_sc1.s", STORE="sc0 sc1")
```
